```python
import torch

def _softmax(x, axis=-1):
    return torch.softmax(x, dim=axis)
def _gelu(x):
    return torch.nn.functional.gelu(x, approximate="tanh")
def _silu(x):
    return torch.nn.functional.silu(x)
def _sigmoid(x):
    return torch.sigmoid(x)
def _layernorm(x, axis=-1, eps=1e-5):
    m = x.mean(dim=axis, keepdim=True)
    v = x.var(dim=axis, keepdim=True, unbiased=False)
    return (x - m) / torch.sqrt(v + eps)
def _scatter_add(tgt, idx, src, axis=0):
    return tgt.clone().index_add_(axis, idx, src)
def _segment_sum(src, seg, n):
    out = torch.zeros((n,) + src.shape[1:], dtype=src.dtype)
    return out.index_add_(0, seg, src)
def _pad(x, pw):
    flat = tuple(v for pair in reversed(pw) for v in pair)
    return torch.nn.functional.pad(x, flat)

kernel_name = 'standalone__cheap_equivariant_egnn__graph'

def setup_inputs():

    _w = (lambda a: (lambda t: t.to(torch.bfloat16) if t.is_floating_point() else t)(torch.as_tensor(a)))
    N, deg, D, De = 10000, 64, 64, max(4, 1)
    E = N * deg
    return {
        "h": _w((lambda *s: torch.randn(*s, dtype=torch.bfloat16) * 0.2)(N, D)),
        "pos": _w((lambda *s: torch.randn(*s, dtype=torch.bfloat16) * 0.8)(N, 3)),
        "e_attr": _w((lambda *s: torch.randn(*s, dtype=torch.bfloat16) * 0.8)(E, De)),
        "src": _w((lambda lo, hi, *s: torch.randint(lo, hi, s))(0, N, E).to(torch.int64)),
        "dst": _w((lambda lo, hi, *s: torch.randint(lo, hi, s))(0, N, E).to(torch.int64)),
        "w_e": _w(0.1 * (lambda *s: torch.randn(*s, dtype=torch.bfloat16) * 0.8)(2 * D + 1 + De, D)),
        "w_x": _w(0.1 * (lambda *s: torch.randn(*s, dtype=torch.bfloat16) * 0.2)(D, 1)),
        "w_h": _w(0.1 * (lambda *s: torch.randn(*s, dtype=torch.bfloat16) * 0.2)(2 * D, D)),
    }

def reference(h, pos, e_attr, src, dst, w_e, w_x, w_h):
    N, D = h.shape[0], h.shape[1]
    diff = pos[dst] - pos[src]
    dist2 = torch.sum(diff * diff, axis=-1, keepdims=True)
    e_in = torch.concatenate([h[dst], h[src], dist2, e_attr], axis=-1)
    m_ij = _silu(e_in @ w_e)
    coord_scale = m_ij @ w_x
    pos_new = pos + _segment_sum(diff * coord_scale, dst, N)
    m_i = _segment_sum(m_ij, dst, N)
    h_new = h + _silu(torch.concatenate([h, m_i], axis=-1) @ w_h)
    return h_new, pos_new
```

```python
import sys, struct

NAME = "standalone__cheap_equivariant_egnn__graph"
N, E, D = 10000, 640000, 64
NWG = 256
CH = 2500
NBIN = NWG * 5

WS_REC = 0
REC_STRIDE = CH * 12
WS_OFFS = 0x760000
WS_POS = 0x860000
WS_WF = 0x888000
WS_END = 0x891000

def f32bits(x):
    return struct.unpack("<I", struct.pack("<f", x))[0]

NLOG2E = f32bits(-1.4426950408889634)
NLN2 = f32bits(-0.6931471805599453)

class Asm:
    def __init__(self):
        self.lines = []
    def __call__(self, s=""):
        for l in s.strip("\n").split("\n"):
            self.lines.append("    " + l.strip() if l.strip() and not l.strip().endswith(":") else l.strip())
    def label(self, l):
        self.lines.append(l + ":")
    def text(self):
        return "\n".join(self.lines) + "\n"

def vr(b, n=1):
    return f"v{b}" if n == 1 else f"v[{b}:{b+n-1}]"
def sr(b, n=1):
    return f"s{b}" if n == 1 else f"s[{b}:{b+n-1}]"

def srd(a, d, base, nbytes, stride=0):
    a(f"s_mov_b32 s{d}, s{base}")
    if stride:
        a(f"s_and_b32 s{d+1}, s{base+1}, 0xffff")
        a(f"s_or_b32 s{d+1}, s{d+1}, {stride << 16:#x}")
    else:
        a(f"s_and_b32 s{d+1}, s{base+1}, 0xffff")
    a(f"s_mov_b32 s{d+2}, {nbytes}")
    a(f"s_mov_b32 s{d+3}, 0x00020000")

def wave_scan(a, regs):
    steps = ["row_shr:1 row_mask:0xf bank_mask:0xf bound_ctrl:0",
             "row_shr:2 row_mask:0xf bank_mask:0xf bound_ctrl:0",
             "row_shr:4 row_mask:0xf bank_mask:0xf bound_ctrl:0",
             "row_shr:8 row_mask:0xf bank_mask:0xf bound_ctrl:0",
             "row_bcast:15 row_mask:0xa bank_mask:0xf",
             "row_bcast:31 row_mask:0xc bank_mask:0xf"]
    a("s_nop 1")
    for st in steps:
        for r in regs:
            a(f"v_add_u32_dpp v{r}, v{r}, v{r} {st}")
        if len(regs) < 3:
            a(f"s_nop {2 - len(regs)}")

def gen_k1(a):
    K1_HIST = 0
    K1_WSUM = 5376
    K1_STAGE = 5632
    a.label("egnn_sort_kernel")
    a(f"""
    s_cmp_ge_u32 s2, {NWG}
    s_cbranch_scc1 K1_END
    s_load_dwordx2 s[4:5], s[0:1], 8
    s_load_dwordx2 s[6:7], s[0:1], 16
    s_load_dwordx2 s[8:9], s[0:1], 24
    s_load_dwordx2 s[10:11], s[0:1], 32
    s_load_dwordx2 s[12:13], s[0:1], 40
    s_load_dwordx2 s[14:15], s[0:1], 56
    s_load_dwordx2 s[16:17], s[0:1], 80
    v_lshlrev_b32 v1, 4, v0
    v_lshlrev_b32 v2, 5, v0
    v_lshlrev_b32 v3, 3, v0
    v_mov_b32 v4, 0
    v_mov_b32 v5, 0
    s_mul_i32 s50, s2, {CH*4}
    s_mul_i32 s51, s2, {CH*8}
    ds_write_b64 v3, v[4:5] offset:{K1_HIST}
    v_lshrrev_b32 v6, 6, v0
    v_and_b32 v7, 63, v0
    s_waitcnt lgkmcnt(0)
    """)
    sD, sS, sE, sP, sWE, sWH, sWS = 20, 24, 28, 32, 36, 40, 44
    srd(a, sD, 10, E * 4)
    srd(a, sS, 8, E * 4)
    srd(a, sE, 6, E * 8)
    a(f"""
    buffer_load_dwordx4 v[8:11], v1, s[{sD}:{sD+3}], s50 offen
    buffer_load_dwordx4 v[12:15], v1, s[{sS}:{sS+3}], s50 offen
    buffer_load_dwordx4 v[16:19], v2, s[{sE}:{sE+3}], s51 offen
    buffer_load_dwordx4 v[20:23], v2, s[{sE}:{sE+3}], s51 offen offset:16
    """)
    srd(a, sP, 4, N * 6)
    srd(a, sWE, 12, 133 * 64 * 2)
    srd(a, sWH, 14, 128 * 64 * 2)
    srd(a, sWS, 16, WS_END)
    a("v_readfirstlane_b32 s52, v6")
    a(f"""
    s_cmp_lg_u32 s52, 0
    s_cbranch_scc1 K1_NOT_W0
    v_lshlrev_b32 v24, 2, v7
    v_cmp_gt_u32 vcc, 16, v7
    s_and_saveexec_b64 s[54:55], vcc
    ds_write_b32 v24, v4 offset:{K1_WSUM}
    v_mov_b32 v25, {NBIN*4}
    v_mov_b32 v26, {CH}
    ds_write_b32 v25, v26 offset:{K1_HIST}
    s_mov_b64 exec, s[54:55]
    s_lshr_b32 s56, s2, 3
    s_and_b32 s57, s2, 7
    s_lshl_b32 s57, s57, 3
    v_lshrrev_b32 v24, 3, v7
    v_add_u32 v24, s57, v24
    v_and_b32 v25, 7, v7
    v_lshrrev_b32 v26, 5, v24
    v_lshl_add_u32 v25, v26, 3, v25
    v_and_b32 v26, 31, v24
    s_and_b32 s58, s56, 15
    s_lshr_b32 s59, s58, 1
    s_lshl_b32 s59, s59, 4
    s_and_b32 s58, s58, 1
    s_lshl_b32 s58, s58, 5
    v_add_u32 v25, s59, v25
    v_add_u32 v26, s58, v26
    v_lshl_add_u32 v25, v25, 6, v26
    v_lshlrev_b32 v25, 1, v25
    s_lshl_b32 s60, s2, 7
    s_add_u32 s60, s60, {WS_WF}
    v_lshlrev_b32 v27, 1, v7
    s_cmp_ge_u32 s56, 16
    s_cbranch_scc1 K1_WF_H
    buffer_load_ushort v28, v25, s[{sWE}:{sWE+3}], 0 offen
    s_branch K1_WF_J
    K1_WF_H:
    buffer_load_ushort v28, v25, s[{sWH}:{sWH+3}], 0 offen
    K1_WF_J:
    s_mov_b32 s61, 1.0
    s_lshr_b32 s62, s56, 3
    s_cmp_eq_u32 s62, 1
    s_cselect_b32 s61, {NLOG2E:#x}, s61
    s_waitcnt vmcnt(0)
    v_lshlrev_b32 v28, 16, v28
    v_mul_f32 v28, s61, v28
    v_cvt_pk_bf16_f32 v28, v28, v28
    buffer_store_short v28, v27, s[{sWS}:{sWS+3}], s60 offen
    s_branch K1_PREP_DONE
    K1_NOT_W0:
    s_cmp_lg_u32 s52, 1
    s_cbranch_scc1 K1_NOT_W1
    s_cmp_ge_u32 s2, 8
    s_cbranch_scc1 K1_PREP_DONE
    s_lshl_b32 s57, s2, 3
    v_lshrrev_b32 v24, 3, v7
    v_add_u32 v24, s57, v24
    v_and_b32 v25, 7, v7
    v_cmp_eq_u32 vcc, 4, v25
    v_add_u32 v25, 129, v25
    v_mov_b32 v26, 128
    v_cndmask_b32 v25, v25, v26, vcc
    v_lshl_add_u32 v25, v25, 6, v24
    v_lshlrev_b32 v25, 1, v25
    buffer_load_ushort v28, v25, s[{sWE}:{sWE+3}], 0 offen
    s_lshl_b32 s60, s2, 7
    s_add_u32 s60, s60, {WS_WF + 32768}
    v_lshlrev_b32 v27, 1, v7
    s_mov_b32 s61, {NLOG2E:#x}
    s_waitcnt vmcnt(0)
    v_lshlrev_b32 v28, 16, v28
    v_mul_f32 v28, s61, v28
    v_cvt_pk_bf16_f32 v28, v28, v28
    buffer_store_short v28, v27, s[{sWS}:{sWS+3}], s60 offen
    s_branch K1_PREP_DONE
    K1_NOT_W1:
    s_cmp_gt_u32 s52, 3
    s_cbranch_scc1 K1_PREP_DONE
    s_cmp_ge_u32 s2, 250
    s_cbranch_scc1 K1_PREP_DONE
    v_subrev_u32 v24, 128, v0
    v_mul_u32_u24 v25, 171, v24
    v_lshrrev_b32 v25, 9, v25
    v_mul_u32_u24 v26, 3, v25
    v_sub_u32 v26, v24, v26
    v_lshlrev_b32 v26, 2, v26
    v_lshl_add_u32 v26, v25, 4, v26
    v_lshlrev_b32 v27, 1, v24
    s_mul_i32 s60, s2, 240
    s_mul_i32 s61, s2, 640
    s_add_u32 s61, s61, {WS_POS}
    v_cmp_gt_u32 vcc, 120, v24
    s_and_saveexec_b64 s[54:55], vcc
    buffer_load_ushort v28, v27, s[{sP}:{sP+3}], s60 offen
    s_waitcnt vmcnt(0)
    v_lshlrev_b32 v28, 16, v28
    buffer_store_dword v28, v26, s[{sWS}:{sWS+3}], s61 offen
    s_mov_b64 exec, s[54:55]
    K1_PREP_DONE:
    s_waitcnt lgkmcnt(0)
    s_barrier
    """)
    a(f"""
    s_mov_b32 s56, 429497
    s_mov_b32 s57, 625
    v_mov_b32 v32, 1
    v_cmp_gt_u32 vcc, {CH//4}, v0
    s_and_saveexec_b64 s[54:55], vcc
    s_waitcnt vmcnt(0)
    """)
    for i in range(4):
        d, s, b = 8 + i, 12 + i, 24 + i
        a(f"""
        v_mul_u32_u24 v33, s56, v{d}
        v_lshrrev_b32 v33, 24, v33
        v_mad_u32_u24 v34, v33, s57, 15
        v_lshrrev_b32 v34, 4, v34
        v_sub_u32 v34, v{d}, v34
        v_lshrrev_b32 v35, 3, v34
        v_and_b32 v34, 7, v34
        v_mad_u32_u24 v{b}, v33, 5, v35
        v_lshlrev_b32 v{b}, 2, v{b}
        ds_add_rtn_u32 v{28+i}, v{b}, v32 offset:{K1_HIST}
        v_lshl_or_b32 v34, v34, 3, v35
        v_lshl_or_b32 v{s}, v{s}, 7, v34
        """)
    a(f"""
    s_mov_b64 exec, s[54:55]
    s_waitcnt lgkmcnt(0)
    s_barrier
    ds_read_b64 v[34:35], v3 offset:{K1_HIST}
    s_waitcnt lgkmcnt(0)
    v_add_u32 v36, v34, v35
    v_mov_b32 v37, v36
    """)
    wave_scan(a, [37])
    a(f"""
    s_lshl_b32 s58, s52, 2
    v_mov_b32 v38, s58
    s_mov_b32 exec_lo, 0
    s_mov_b32 exec_hi, 0x80000000
    ds_write_b32 v38, v37 offset:{K1_WSUM}
    s_mov_b64 exec, -1
    v_and_b32 v38, 15, v7
    v_lshlrev_b32 v39, 2, v38
    s_waitcnt lgkmcnt(0)
    s_barrier
    ds_read_b32 v39, v39 offset:{K1_WSUM}
    v_cmp_gt_u32 vcc, s52, v38
    v_sub_u32 v37, v37, v36
    s_waitcnt lgkmcnt(0)
    v_cndmask_b32 v39, 0, v39, vcc
    s_nop 1
    v_add_u32_dpp v39, v39, v39 row_shr:1 row_mask:0xf bank_mask:0xf bound_ctrl:0
    s_nop 1
    v_add_u32_dpp v39, v39, v39 row_shr:2 row_mask:0xf bank_mask:0xf bound_ctrl:0
    s_nop 1
    v_add_u32_dpp v39, v39, v39 row_shr:4 row_mask:0xf bank_mask:0xf bound_ctrl:0
    s_nop 1
    v_add_u32_dpp v39, v39, v39 row_shr:8 row_mask:0xf bank_mask:0xf bound_ctrl:0
    s_nop 1
    v_readlane_b32 s58, v39, 15
    s_nop 1
    v_add_u32 v36, s58, v37
    v_add_u32 v37, v36, v34
    ds_write_b64 v3, v[36:37] offset:{K1_HIST}
    s_waitcnt lgkmcnt(0)
    s_barrier
    v_cmp_gt_u32 vcc, {CH//4}, v0
    s_and_saveexec_b64 s[54:55], vcc
    ds_read_b32 v24, v24 offset:{K1_HIST}
    ds_read_b32 v25, v25 offset:{K1_HIST}
    ds_read_b32 v26, v26 offset:{K1_HIST}
    ds_read_b32 v27, v27 offset:{K1_HIST}
    s_mov_b64 exec, s[54:55]
    s_cmp_gt_u32 s52, 3
    s_cbranch_scc1 K1_NO_OFFS
    v_mul_u32_u24 v33, 20, v0
    ds_read2_b32 v[34:35], v33 offset0:0 offset1:1
    ds_read2_b32 v[36:37], v33 offset0:2 offset1:3
    ds_read2_b32 v[38:39], v33 offset0:4 offset1:5
    s_lshl_b32 s60, s2, 12
    s_add_u32 s60, s60, {WS_OFFS}
    s_waitcnt lgkmcnt(0)
    v_lshl_or_b32 v40, v35, 16, v34
    v_lshl_or_b32 v41, v37, 16, v36
    v_lshl_or_b32 v42, v39, 16, v38
    v_mov_b32 v43, 0
    buffer_store_dwordx4 v[40:43], v1, s[{sWS}:{sWS+3}], s60 offen
    K1_NO_OFFS:
    v_cmp_gt_u32 vcc, {CH//4}, v0
    s_and_saveexec_b64 s[54:55], vcc
    s_waitcnt lgkmcnt(0)
    """)
    for i in range(4):
        a(f"""
        v_add_u32 v{24+i}, v{24+i}, v{28+i}
        v_mul_u32_u24 v{24+i}, 12, v{24+i}
        v_add_u32 v{24+i}, {K1_STAGE}, v{24+i}
        ds_write_b32 v{24+i}, v{12+i}
        ds_write2_b32 v{24+i}, v{16+2*i}, v{17+2*i} offset0:1 offset1:2
        """)
    nq = REC_STRIDE // 16
    a(f"""
    s_mov_b64 exec, s[54:55]
    s_mul_i32 s60, s2, {REC_STRIDE}
    s_add_u32 s61, s60, {640*16}
    s_add_u32 s62, s60, {2*640*16}
    s_waitcnt lgkmcnt(0)
    s_barrier
    ds_read_b128 v[8:11], v1 offset:{K1_STAGE}
    ds_read_b128 v[12:15], v1 offset:{K1_STAGE + 640*16}
    ds_read_b128 v[16:19], v1 offset:{K1_STAGE + 2*640*16}
    s_waitcnt lgkmcnt(2)
    buffer_store_dwordx4 v[8:11], v1, s[{sWS}:{sWS+3}], s60 offen
    s_waitcnt lgkmcnt(1)
    buffer_store_dwordx4 v[12:15], v1, s[{sWS}:{sWS+3}], s61 offen
    v_cmp_gt_u32 vcc, {nq - 1280}, v0
    s_and_saveexec_b64 s[54:55], vcc
    s_cbranch_execz K1_END
    s_waitcnt lgkmcnt(0)
    buffer_store_dwordx4 v[16:19], v1, s[{sWS}:{sWS+3}], s62 offen
    K1_END:
    s_endpgm
    """)
    return K1_STAGE + 3 * 640 * 16, 44, 64

NW = 12
CAP = 3200
CAPB = CAP - 5 * 31
L_LIST = 0
L_STG = CAP * 12
L_A2 = L_STG + NW * 4096
A2_SZ = 9 * 288
ACCM_STRIDE = 272
L_ACCM = L_A2 + NW * A2_SZ
L_ACCP = L_ACCM + 40 * ACCM_STRIDE
L_AOP = L_ACCP + 120 * 144
L_XC = L_AOP + 5120
L_OH = L_XC + 1024
L_POSD = L_OH + 256
L_MISC = L_POSD + 768
L_END = L_MISC + 256
L_TAB = L_STG

def gen_k2(a):
    sH, sWS, sP32, sOUT, sWX = 8, 12, 16, 20, 24
    sW, sNS, sNN, sCB, sCE = 28, 29, 30, 31, 43
    sGTS = 32
    sNG = 38
    sT, sT1, sTE, sG, sSTG = 44, 45, 46, 47, 48
    sMASK = 49
    sLO, sHI = 50, 52
    sTMP = 54
    vLANE = 1
    vW2, vBX, vD2, vD1, vA1, vX, vI, vP, vWD, vQ = 4, 36, 44, 76, 108, 124, 128, 132, 135, 136
    vG3, vW0, vT, vA1A, vA2A, vCK, vRA, vTRB, vBASEV, vBASE2, vPI, vPW = 139, 140, 141, 142, 143, 144, 148, 152, 153, 154, 155, 156
    vZ = 158
    vWX = 160
    vF5, vHH = 162, 163
    NV = 164

    a.label("egnn_main_kernel")
    a(f"""
    s_cmp_ge_u32 s2, {NWG}
    s_cbranch_scc1 K2_END
    s_load_dwordx2 s[54:55], s[0:1], 0
    s_load_dwordx2 s[56:57], s[0:1], 48
    s_load_dwordx2 s[58:59], s[0:1], 64
    s_load_dwordx2 s[60:61], s[0:1], 80
    v_and_b32 v{vLANE}, 63, v0
    v_lshrrev_b32 v2, 6, v0
    v_and_b32 v{vF5}, 31, v0
    v_bfe_u32 v{vHH}, v0, 5, 1
    v_readfirstlane_b32 s{sW}, v2
    s_mul_i32 s{sNS}, s2, 625
    s_add_u32 s{sNN}, s{sNS}, {625+15}
    s_add_u32 s{sNS}, s{sNS}, 15
    s_lshr_b32 s{sNS}, s{sNS}, 4
    s_lshr_b32 s{sNN}, s{sNN}, 4
    s_sub_u32 s{sNN}, s{sNN}, s{sNS}
    s_mov_b32 s{sCB}, 0
    s_mov_b32 s{sLO}, -1
    s_mov_b32 s{sLO+1}, 0
    s_mov_b32 s{sHI}, 0
    s_mov_b32 s{sHI+1}, -1
    s_mov_b32 s{sMASK}, 0xffffff80
    s_waitcnt lgkmcnt(0)
    """)
    srd(a, sH, 54, N * 128)
    srd(a, sWS, 60, WS_END)
    a(f"""
    s_add_u32 s62, s60, {WS_POS}
    s_addc_u32 s63, s61, 0
    """)
    srd(a, sP32, 62, N, stride=16)
    srd(a, sOUT, 58, N * 67 * 2)
    srd(a, sWX, 56, 128)
    vO = 76
    a(f"""
    s_lshl_b32 s64, s2, 4
    s_add_u32 s64, s64, {WS_OFFS}
    v_lshlrev_b32 v3, 12, v0
    s_cmp_gt_u32 s{sW}, 3
    s_cbranch_scc1 K2_P0_A
    buffer_load_dwordx4 v[{vO}:{vO+3}], v3, s[{sWS}:{sWS+3}], s64 offen
    K2_P0_A:
    v_lshlrev_b32 v2, 4, v{vLANE}
    s_mov_b32 s65, {WS_WF + 8*1024}
    s_mov_b32 s66, {WS_WF + 12*1024}
    """)
    for i in range(8):
        so = "s65" if i < 4 else "s66"
        a(f"buffer_load_dwordx4 v[{vW2+4*i}:{vW2+4*i+3}], v2, s[{sWS}:{sWS+3}], {so} offen offset:{(i%4)*1024}")
    a(f"""
    v_lshlrev_b32 v3, 1, v{vF5}
    buffer_load_ushort v{vWX}, v3, s[{sWX}:{sWX+3}], 0 offen
    buffer_load_ushort v{vWX+1}, v3, s[{sWX}:{sWX+3}], 0 offen offset:64
    v_mov_b32 v108, 0
    v_mov_b32 v109, 0
    v_mov_b32 v110, 0
    v_mov_b32 v111, 0
    v_mov_b32 v{vZ}, 0
    v_mov_b32 v{vZ+1}, 0
    v_lshlrev_b32 v3, 4, v0
    v_add_u32 v3, {L_A2}, v3
    """)
    zq = (L_AOP - L_A2) // 16
    nfull = zq // 768
    for r in range(nfull):
        a(f"ds_write_b128 v3, v[108:111] offset:{r*768*16}")
    a(f"""
    v_cmp_gt_u32 vcc, {zq - nfull*768}, v0
    s_and_saveexec_b64 s[54:55], vcc
    ds_write_b128 v3, v[108:111] offset:{nfull*768*16}
    s_mov_b64 exec, s[54:55]
    """)
    a(f"""
    s_lshl_b32 s{sSTG}, s{sW}, 12
    s_add_u32 s{sSTG}, s{sSTG}, {L_STG}
    v_lshrrev_b32 v112, 3, v{vLANE}
    v_and_b32 v112, 4, v112
    v_and_b32 v113, 7, v{vLANE}
    v_xor_b32 v113, v113, v112
    """)
    for i in range(4):
        a(f"""
        v_xor_b32 v{vCK+i}, {i}, v113
        v_lshlrev_b32 v{vCK+i}, 4, v{vCK+i}
        """)
    a(f"""
    v_and_b32 v112, 3, v{vF5}
    v_lshrrev_b32 v113, 2, v{vF5}
    v_lshl_add_u32 v114, v112, 3, v113
    v_lshlrev_b32 v114, 7, v114
    v_add_u32 v114, s{sSTG}, v114
    v_and_b32 v113, 4, v113
    v_or_b32 v112, v112, v113
    v_xor_b32 v112, v112, v{vHH}
    """)
    for ks in range(4):
        a(f"""
        v_xor_b32 v113, {2*ks}, v112
        v_lshl_add_u32 v{vRA+ks}, v113, 4, v114
        """)
    a(f"""
    s_mul_i32 s54, s{sW}, {A2_SZ}
    s_add_u32 s54, s54, {L_A2}
    v_lshlrev_b32 v{vBASE2}, 3, v{vF5}
    v_add_u32 v{vBASE2}, s54, v{vBASE2}
    v_bfe_u32 v112, v{vLANE}, 4, 1
    v_and_b32 v113, 3, v{vLANE}
    v_lshl_add_u32 v112, v112, 2, v113
    v_mul_u32_u24 v112, 288, v112
    v_bfe_u32 v113, v{vLANE}, 2, 2
    v_lshl_add_u32 v113, v{vHH}, 2, v113
    v_lshl_add_u32 v112, v113, 3, v112
    v_add_u32 v{vTRB}, s54, v112
    """)
    a(f"""
    s_cmp_lt_u32 s{sW}, 4
    s_cbranch_scc1 K2_BATCH
    s_cmp_gt_u32 s{sW}, 8
    s_cbranch_scc1 K2_BATCH
    s_cmp_eq_u32 s{sW}, 8
    s_cbranch_scc1 K2_TABLES
    s_sub_u32 s54, s{sW}, 4
    s_lshr_b32 s55, s54, 1
    s_and_b32 s56, s54, 1
    v_bfe_u32 v112, v{vF5}, 2, 1
    v_lshrrev_b32 v113, 4, v{vF5}
    v_lshl_add_u32 v112, v112, 1, v113
    v_bfe_u32 v113, v{vF5}, 3, 1
    v_and_b32 v114, 3, v{vF5}
    v_lshl_add_u32 v113, v113, 2, v114
    v_lshl_add_u32 v112, v112, 3, v113
    s_lshl_b32 s57, s55, 5
    s_add_u32 s57, s57, s{sNS}
    v_add_u32 v112, s57, v112
    v_lshlrev_b32 v112, 7, v112
    v_lshl_add_u32 v112, v{vHH}, 4, v112
    s_lshl_b32 s57, s56, 10
    s_add_u32 s57, s57, {WS_WF}
    s_add_u32 s58, s57, 4096
    """)
    for ks in range(4):
        a(f"buffer_load_dwordx4 v[{76+4*ks}:{79+4*ks}], v112, s[{sH}:{sH+3}], 0 offen offset:{ks*32}")
    for ks in range(4):
        so = "s57" if ks < 2 else "s58"
        a(f"buffer_load_dwordx4 v[{92+4*ks}:{95+4*ks}], v2, s[{sWS}:{sWS+3}], {so} offen offset:{(ks%2)*2048}")
    a("s_waitcnt vmcnt(0)")
    for ks in range(4):
        c = "0" if ks == 0 else "v[44:59]"
        a(f"v_mfma_f32_32x32x16_bf16 v[44:59], v[{76+4*ks}:{79+4*ks}], v[{92+4*ks}:{95+4*ks}], {c}")
    a(f"""
    s_mov_b32 s58, {NLOG2E:#x}
    s_lshl_b32 s57, s55, 12
    s_lshl_b32 s59, s56, 9
    s_add_u32 s57, s57, s59
    s_add_u32 s57, s57, {L_AOP}
    v_lshlrev_b32 v112, 11, v{vHH}
    v_lshl_add_u32 v112, v{vF5}, 4, v112
    v_add_u32 v112, s57, v112
    s_nop 7
    """)
    for r in range(16):
        a(f"v_mul_f32 v{44+r}, s58, v{44+r}")
    for r in range(8):
        a(f"v_cvt_pk_bf16_f32 v{60+r}, v{44+2*r}, v{45+2*r}")
    a(f"""
    s_cmp_eq_u32 s55, 1
    s_cbranch_scc1 K2_AP_NT1
    ds_write_b128 v112, v[60:63]
    ds_write_b128 v112, v[64:67] offset:1024
    s_branch K2_BATCH
    K2_AP_NT1:
    s_mov_b64 exec, s[{sLO}:{sLO+1}]
    ds_write_b128 v112, v[60:63]
    s_mov_b64 exec, -1
    s_branch K2_BATCH
    K2_TABLES:
    v_add_u32 v112, s{sNS}, v{vLANE}
    buffer_load_dwordx4 v[76:79], v112, s[{sP32}:{sP32+3}], 0 idxen
    s_mov_b32 s57, {WS_WF + 32768}
    buffer_load_dwordx4 v[80:83], v2, s[{sWS}:{sWS+3}], s57 offen
    v_lshrrev_b32 v113, 2, v{vLANE}
    v_and_b32 v114, 3, v{vLANE}
    v_lshlrev_b32 v114, 1, v114
    v_sub_u32 v113, v113, v114
    v_mov_b32 v115, 0x3f80
    v_mov_b32 v116, 0x3f800000
    v_cmp_eq_u32 vcc, 0, v113
    v_cmp_eq_u32 s[54:55], 1, v113
    v_cmp_gt_u32 s[56:57], 32, v{vLANE}
    v_cndmask_b32 v114, 0, v115, vcc
    v_cndmask_b32 v114, v114, v116, s[54:55]
    v_cndmask_b32 v114, 0, v114, s[56:57]
    v_lshlrev_b32 v113, 2, v{vLANE}
    v_add_u32 v113, {L_OH}, v113
    ds_write_b32 v113, v114
    v_add_u32 v113, {L_XC}, v2
    s_waitcnt vmcnt(0)
    ds_write_b128 v113, v[80:83]
    v_cmp_gt_u32 vcc, 48, v{vLANE}
    s_and_saveexec_b64 s[54:55], vcc
    v_add_u32 v113, {L_POSD}, v2
    ds_write_b128 v113, v[76:79]
    s_mov_b64 exec, s[54:55]
    """)
    vC, vS, vOG = 80, 85, 90
    a.label("K2_BATCH")
    a(f"""
    s_cmp_gt_u32 s{sW}, 3
    s_cbranch_scc1 K2_B1
    s_waitcnt vmcnt(0)
    v_and_b32 v{vOG}, 0xffff, v{vO}
    v_lshrrev_b32 v{vOG+1}, 16, v{vO}
    v_and_b32 v{vOG+2}, 0xffff, v{vO+1}
    v_lshrrev_b32 v{vOG+3}, 16, v{vO+1}
    v_and_b32 v{vOG+4}, 0xffff, v{vO+2}
    v_lshrrev_b32 v{vOG+5}, 16, v{vO+2}
    v_cmp_le_u32 vcc, s{sCB}, v0
    """)
    for g in range(5):
        a(f"v_sub_u32 v{vC+g}, v{vOG+g+1}, v{vOG+g}")
    for g in range(5):
        a(f"v_cndmask_b32 v{vC+g}, 0, v{vC+g}, vcc")
    for g in range(5):
        a(f"v_mov_b32 v{vS+g}, v{vC+g}")
    wave_scan(a, [vS + g for g in range(5)])
    a(f"""
    s_lshl_b32 s54, s{sW}, 5
    s_add_u32 s54, s54, {L_MISC}
    v_mov_b32 v96, s54
    s_mov_b32 exec_lo, 0
    s_mov_b32 exec_hi, 0x80000000
    ds_write2_b32 v96, v{vS}, v{vS+1} offset0:0 offset1:1
    ds_write2_b32 v96, v{vS+2}, v{vS+3} offset0:2 offset1:3
    ds_write_b32 v96, v{vS+4} offset:16
    s_mov_b64 exec, -1
    K2_B1:
    v_lshlrev_b32 v96, 2, v{vLANE}
    v_add_u32 v96, {L_MISC}, v96
    s_waitcnt lgkmcnt(0)
    s_barrier
    ds_read_b32 v96, v96
    s_waitcnt lgkmcnt(0)
    """)
    for w in range(4):
        for g in range(5):
            a(f"v_readlane_b32 s{60+w*5+g}, v96, {w*8+g}")
    a("s_nop 1")
    for g in range(5):
        a(f"""
        s_add_u32 s{65+g}, s{65+g}, s{60+g}
        s_add_u32 s{70+g}, s{70+g}, s{65+g}
        s_add_u32 s{sNG+g}, s{75+g}, s{70+g}
        """)
    a(f"""
    s_add_u32 s54, s{sNG}, s{sNG+1}
    s_add_u32 s54, s54, s{sNG+2}
    s_add_u32 s54, s54, s{sNG+3}
    s_add_u32 s54, s54, s{sNG+4}
    s_mov_b32 s{sCE}, {NWG}
    s_cmp_gt_u32 s{sW}, 3
    s_cbranch_scc1 K2_B2
    s_cmp_eq_u32 s{sW}, 0
    s_cbranch_scc1 K2_B2
    s_cmp_eq_u32 s{sW}, 2
    """)
    for g in range(5):
        a(f"s_cselect_b32 s{60+g}, s{65+g}, s{60+g}")
    a(f"s_cmp_eq_u32 s{sW}, 3")
    for g in range(5):
        a(f"s_cselect_b32 s{60+g}, s{70+g}, s{60+g}")
    for g in range(5):
        a(f"v_add_u32 v{vS+g}, s{60+g}, v{vS+g}")
    a(f"""
    K2_B2:
    s_cmp_le_u32 s54, {CAPB}
    s_cbranch_scc1 K2_B3
    s_cmp_gt_u32 s{sW}, 3
    s_cbranch_scc1 K2_SL1
    v_add3_u32 v96, v{vS}, v{vS+1}, v{vS+2}
    v_add3_u32 v96, v96, v{vS+3}, v{vS+4}
    v_cmp_le_u32 s[54:55], s{sCB}, v0
    v_cmp_ge_u32 vcc, {CAPB}, v96
    s_and_b64 s[54:55], s[54:55], vcc
    s_flbit_i32_b64 s56, s[54:55]
    s_sub_u32 s56, 63, s56
    s_and_b32 s56, s56, 63
    s_lshl_b32 s57, s{sW}, 6
    s_add_u32 s57, s57, s56
    s_add_u32 s57, s57, 1
    s_cmp_eq_u64 s[54:55], 0
    s_cselect_b32 s57, 0, s57
    s_lshl_b64 s[54:55], 1, s56
    s_lshl_b32 s58, s{sW}, 5
    s_add_u32 s58, s58, {L_MISC + 128}
    v_mov_b32 v96, s58
    v_mov_b32 v97, s57
    s_mov_b64 exec, s[54:55]
    ds_write2_b32 v96, v{vS}, v{vS+1} offset0:0 offset1:1
    ds_write2_b32 v96, v{vS+2}, v{vS+3} offset0:2 offset1:3
    ds_write2_b32 v96, v{vS+4}, v97 offset0:4 offset1:5
    s_mov_b64 exec, -1
    K2_SL1:
    v_and_b32 v96, 31, v{vLANE}
    v_lshlrev_b32 v96, 2, v96
    v_add_u32 v96, {L_MISC + 128}, v96
    s_waitcnt lgkmcnt(0)
    s_barrier
    ds_read_b32 v96, v96
    s_waitcnt lgkmcnt(0)
    """)
    for w in range(4):
        for g in range(6):
            a(f"v_readlane_b32 s{60+g}, v96, {w*8+g}")
        a("s_nop 1")
        a("s_cmp_lg_u32 s65, 0")
        for g in range(5):
            a(f"s_cselect_b32 s{sNG+g}, s{60+g}, s{sNG+g}")
        a(f"s_cselect_b32 s{sCE}, s65, s{sCE}")
    a.label("K2_B3")
    a(f"s_mov_b32 s{sGTS}, 0")
    for g in range(5):
        a(f"""
        s_add_u32 s54, s{sNG+g}, 31
        s_lshr_b32 s54, s54, 5
        s_add_u32 s{sGTS+g+1}, s{sGTS+g}, s54
        """)
    a(f"""
    s_cmp_gt_u32 s{sW}, 3
    s_cbranch_scc1 K2_B4
    """)
    for g in range(5):
        a(f"""
        s_lshl_b32 s54, s{sGTS+g}, 5
        v_sub_u32 v{96+g}, v{vS+g}, v{vC+g}
        v_sub_u32 v{96+g}, v{96+g}, v{vOG+g}
        v_add_u32 v{96+g}, s54, v{96+g}
        """)
    a(f"""
    v_mov_b32 v101, 0
    v_mov_b32 v102, v{vOG}
    v_sub_u32 v103, v{vOG+5}, v{vOG}
    v_cmp_le_u32 s[54:55], s{sCB}, v0
    v_cmp_gt_u32 vcc, s{sCE}, v0
    s_and_b64 vcc, vcc, s[54:55]
    v_lshlrev_b32 v104, 5, v0
    v_add_u32 v104, {L_TAB}, v104
    v_cndmask_b32 v103, 0, v103, vcc
    ds_write_b128 v104, v[96:99]
    ds_write_b128 v104, v[100:103] offset:16
    s_branch K2_B5
    K2_B4:
    s_cmp_lg_u32 s{sW}, 11
    s_cbranch_scc1 K2_B5
    ; pads
    v_mov_b32 v97, 64
    """)
    for g in range(5):
        a(f"""
        s_lshl_b32 s54, s{sGTS+g}, 5
        s_add_u32 s54, s54, s{sNG+g}
        s_lshl_b32 s55, s{sGTS+g+1}, 5
        v_add_u32 v96, s54, v{vLANE}
        v_cmp_gt_u32 vcc, s55, v96
        v_mul_u32_u24 v96, 12, v96
        s_and_saveexec_b64 s[56:57], vcc
        ds_write_b32 v96, v97 offset:{L_LIST}
        ds_write2_b32 v96, v{vZ}, v{vZ} offset0:1 offset1:2
        s_mov_b64 exec, s[56:57]
        """)
    vTA, vI16, vREL, vCBASE = 76, 77, 78, 79
    vSC = 80
    vRL = 92
    vRH = 44
    vVI = 68
    vDL = 116
    vDH = 122
    a(f"""
    K2_B5:
    s_lshl_b32 s54, s{sW}, 2
    v_lshrrev_b32 v{vTA}, 4, v{vLANE}
    v_add_u32 v{vTA}, s54, v{vTA}
    s_mov_b32 s55, {REC_STRIDE}
    v_mul_lo_u32 v{vCBASE}, v{vTA}, s55
    v_lshlrev_b32 v{vTA}, 5, v{vTA}
    v_add_u32 v{vTA}, {L_TAB}, v{vTA}
    v_and_b32 v{vREL}, 15, v{vLANE}
    s_waitcnt lgkmcnt(0)
    s_barrier
    """)
    for r in range(6):
        a(f"ds_read_b64 v[{vSC+2*r}:{vSC+2*r+1}], v{vTA} offset:{24 + r*1536}")
    a(f"""
    s_waitcnt lgkmcnt(0)
    s_cmp_lt_u32 s{sW}, 4
    s_cbranch_scc1 K2_CP_LOOP
    v_mov_b32 v{vSC+10}, 0
    v_mov_b32 v{vSC+11}, 0
    K2_CP_LOOP:
    v_add_u32 v{vI16}, 16, v{vREL}
    """)
    sML, sMH = 60, 72
    for r in range(6):
        a(f"""
        v_cmp_lt_u32 s[{sML+2*r}:{sML+2*r+1}], v{vREL}, v{vSC+2*r+1}
        v_cmp_lt_u32 s[{sMH+2*r}:{sMH+2*r+1}], v{vI16}, v{vSC+2*r+1}
        v_add_u32 v{vVI+r}, v{vREL}, v{vSC+2*r}
        v_mad_u32_u24 v{vDL+r}, v{vVI+r}, 12, v{vCBASE}
        s_mov_b32 s54, {r*48*REC_STRIDE}
        s_mov_b64 exec, s[{sML+2*r}:{sML+2*r+1}]
        s_cbranch_execz K2_CP_LD{r}
        buffer_load_dwordx3 v[{vRL+4*r}:{vRL+4*r+2}], v{vDL+r}, s[{sWS}:{sWS+3}], s54 offen
        s_mov_b64 exec, s[{sMH+2*r}:{sMH+2*r+1}]
        s_cbranch_execz K2_CP_LD{r}
        buffer_load_dwordx3 v[{vRH+4*r}:{vRH+4*r+2}], v{vDL+r}, s[{sWS}:{sWS+3}], s54 offen offset:192
        K2_CP_LD{r}:
        s_mov_b64 exec, -1
        """)
    a("s_waitcnt vmcnt(0)")
    for r in range(6):
        a(f"""
        v_and_b32 v{vDL+r}, 7, v{vRL+4*r}
        v_lshl_add_u32 v{vDL+r}, v{vDL+r}, 2, v{vTA}
        ds_read_b32 v{vDL+r}, v{vDL+r} offset:{r*1536}
        v_and_b32 v{vDH+r}, 7, v{vRH+4*r}
        v_lshl_add_u32 v{vDH+r}, v{vDH+r}, 2, v{vTA}
        ds_read_b32 v{vDH+r}, v{vDH+r} offset:{r*1536}
        """)
    a("s_waitcnt lgkmcnt(0)")
    for r in range(6):
        a(f"""
        v_add_u32 v{vDL+r}, v{vDL+r}, v{vVI+r}
        v_mul_u32_u24 v{vDL+r}, 12, v{vDL+r}
        s_mov_b64 exec, s[{sML+2*r}:{sML+2*r+1}]
        ds_write_b32 v{vDL+r}, v{vRL+4*r} offset:{L_LIST}
        ds_write2_b32 v{vDL+r}, v{vRL+4*r+1}, v{vRL+4*r+2} offset0:1 offset1:2
        s_mov_b64 exec, s[{sMH+2*r}:{sMH+2*r+1}]
        s_cbranch_execz K2_CP_ST{r}
        v_add3_u32 v{vDH+r}, v{vDH+r}, v{vVI+r}, 16
        v_mul_u32_u24 v{vDH+r}, 12, v{vDH+r}
        ds_write_b32 v{vDH+r}, v{vRH+4*r} offset:{L_LIST}
        ds_write2_b32 v{vDH+r}, v{vRH+4*r+1}, v{vRH+4*r+2} offset0:1 offset1:2
        K2_CP_ST{r}:
        s_mov_b64 exec, -1
        """)
    a(f"""
    v_max3_u32 v{vI16}, v{vSC+1}, v{vSC+3}, v{vSC+5}
    v_max3_u32 v{vI16}, v{vI16}, v{vSC+7}, v{vSC+9}
    v_max_u32 v{vI16}, v{vI16}, v{vSC+11}
    v_add_u32 v{vREL}, 32, v{vREL}
    v_cmp_lt_u32 vcc, v{vREL}, v{vI16}
    s_cbranch_vccnz K2_CP_LOOP
    s_mul_i32 s{sT}, s{sW}, s{sGTS+5}
    s_add_u32 s{sT1}, s{sT}, s{sGTS+5}
    s_mul_i32 s{sT}, s{sT}, 5462
    s_mul_i32 s{sT1}, s{sT1}, 5462
    s_lshr_b32 s{sT}, s{sT}, 16
    s_lshr_b32 s{sT1}, s{sT1}, 16
    s_mul_i32 s54, s{sT}, 384
    v_mul_u32_u24 v{vPW}, 12, v{vF5}
    v_add_u32 v{vPW}, s54, v{vPW}
    v_lshrrev_b32 v{vPI}, 3, v{vLANE}
    v_mul_u32_u24 v{vPI}, 48, v{vPI}
    v_add_u32 v{vPI}, s54, v{vPI}
    v_lshlrev_b32 v{vWX}, 16, v{vWX}
    v_lshlrev_b32 v{vWX+1}, 16, v{vWX+1}
    s_waitcnt lgkmcnt(0)
    s_barrier
    s_cmp_ge_u32 s{sT}, s{sT1}
    s_cbranch_scc1 K2_WAVE_DONE
    ds_read2_b32 v[{vI}:{vI+1}], v{vPI} offset0:0 offset1:3
    ds_read2_b32 v[{vI+2}:{vI+3}], v{vPI} offset0:6 offset1:9
    ds_read_b32 v{vWD}, v{vPW}
    s_waitcnt lgkmcnt(0)
    """)
    def gather_issue():
        for i in range(4):
            a(f"v_and_or_b32 v{vI+i}, v{vI+i}, s{sMASK}, v{vCK+i}")
        for i in range(4):
            if i == 0:
                a(f"s_mov_b32 m0, s{sSTG}")
            else:
                a(f"s_add_u32 m0, m0, 1024")
            a("s_nop 0")
            a(f"buffer_load_dwordx4 v{vI+i}, s[{sH}:{sH+3}], 0 offen lds")
    gather_issue()
    a(f"""
    v_lshrrev_b32 v{vT}, 7, v{vWD}
    s_mov_b64 exec, s[{sHI}:{sHI+1}]
    buffer_load_dwordx3 v[{vP}:{vP+2}], v{vT}, s[{sP32}:{sP32+3}], 0 idxen
    s_mov_b64 exec, -1
    s_mov_b32 s{sG}, 0
    """)
    for g in range(1, 5):
        a(f"""
        s_cmp_ge_u32 s{sT}, s{sGTS+g}
        s_cselect_b32 s{sG}, {g}, s{sG}
        """)
    a.label("K2_GROUP")
    a(f"s_mov_b32 s{sTE}, s{sGTS+1}")
    for g in range(1, 5):
        a(f"""
        s_cmp_eq_u32 s{sG}, {g}
        s_cselect_b32 s{sTE}, s{sGTS+g+1}, s{sTE}
        """)
    a(f"""
    s_min_u32 s{sTE}, s{sTE}, s{sT1}
    s_cmp_ge_u32 s{sT}, s{sTE}
    s_cbranch_scc1 K2_NEXT_GROUP
    s_lshl_b32 s54, s{sG}, 10
    s_add_u32 s54, s54, {L_AOP}
    s_lshl_b32 s55, s{sG}, 7
    s_add_u32 s55, s55, {L_POSD}
    v_mov_b32 v{vT}, s54
    v_mov_b32 v{vA1A}, {L_XC}
    v_mov_b32 v{vBASEV}, {L_OH}
    v_mov_b32 v{vA2A}, s55
    v_cndmask_b32 v{vT}, v{vT}, v{vA1A}, s[{sHI}:{sHI+1}]
    v_cndmask_b32 v{vBASEV}, v{vBASEV}, v{vA2A}, s[{sHI}:{sHI+1}]
    v_lshl_add_u32 v{vT}, v{vF5}, 4, v{vT}
    ds_read_b128 v[{vBX}:{vBX+3}], v{vT}
    ds_read_b128 v[{vBX+4}:{vBX+7}], v{vT} offset:512
    """)
    for r in range(32):
        a(f"v_mov_b32 v{vD2+r}, 0")
    a.label("K2_TILE")
    a(f"""
    v_and_b32 v{vT}, 0x78, v{vWD}
    v_lshl_add_u32 v{vA1A}, v{vT}, 1, v{vBASEV}
    v_mad_u32_u24 v{vA2A}, v{vT}, 36, v{vBASE2}
    s_add_u32 s{sT}, s{sT}, 1
    s_waitcnt vmcnt(0)
    """)
    for ks in range(4):
        a(f"ds_read_b128 v[{vA1+4*ks}:{vA1+4*ks+3}], v{vRA+ks}")
    a(f"""
    ds_read2_b32 v[{vI}:{vI+1}], v{vPI} offset0:96 offset1:99
    ds_read2_b32 v[{vI+2}:{vI+3}], v{vPI} offset0:102 offset1:105
    ds_read_b32 v{vWD}, v{vPW} offset:384
    s_mov_b64 exec, s[{sLO}:{sLO+1}]
    ds_read_b128 v[{vX}:{vX+3}], v{vA1A}
    s_mov_b64 exec, s[{sHI}:{sHI+1}]
    ds_read2_b32 v[{vX}:{vX+1}], v{vPW} offset0:1 offset1:2
    ds_read_b96 v[{vQ}:{vQ+2}], v{vA1A}
    s_mov_b64 exec, -1
    v_add_u32 v{vPI}, 384, v{vPI}
    v_add_u32 v{vPW}, 384, v{vPW}
    s_cmp_ge_u32 s{sT}, s{sT1}
    s_waitcnt lgkmcnt(4)
    s_cbranch_scc1 K2_NO_PF
    """)
    gather_issue()
    a.label("K2_NO_PF")
    def mf1(ct, ks):
        d = vD1 + 16 * ct
        c = "0" if ks == 0 else f"v[{d}:{d+15}]"
        if ks < 4:
            aop = vA1 + 4 * ks
            bop = vW2 + 4 * (ks * 2 + ct)
        else:
            aop = vX
            bop = vBX + 4 * ct
        a(f"v_mfma_f32_32x32x16_bf16 v[{d}:{d+15}], v[{aop}:{aop+3}], v[{bop}:{bop+3}], {c}")
    mf1(0, 0)
    mf1(0, 1)
    a(f"""
    s_waitcnt lgkmcnt(0)
    s_mov_b64 exec, s[{sHI}:{sHI+1}]
    v_pk_add_f32 v[{vQ}:{vQ+1}], v[{vQ}:{vQ+1}], v[{vP}:{vP+1}] neg_lo:[0,1] neg_hi:[0,1]
    v_sub_f32 v{vQ+2}, v{vQ+2}, v{vP+2}
    v_lshrrev_b32 v{vT}, 7, v{vWD}
    v_mul_f32 v{vG3}, v{vQ}, v{vQ}
    v_fmac_f32 v{vG3}, v{vQ+1}, v{vQ+1}
    v_fmac_f32 v{vG3}, v{vQ+2}, v{vQ+2}
    v_cvt_pk_bf16_f32 v{vX+3}, v{vQ+1}, v{vQ+2}
    v_cvt_pk_bf16_f32 v{vW0}, 1.0, v{vQ}
    v_cvt_pk_bf16_f32 v{vX+2}, v{vG3}, v{vQ}
    ds_write2_b32 v{vA2A}, v{vW0}, v{vX+3} offset0:0 offset1:1
    s_cbranch_scc1 K2_NO_PF2
    buffer_load_dwordx3 v[{vP}:{vP+2}], v{vT}, s[{sP32}:{sP32+3}], 0 idxen
    K2_NO_PF2:
    s_mov_b64 exec, -1
    """)
    mf1(0, 2); mf1(0, 3); mf1(0, 4)
    for ks in range(5):
        mf1(1, ks)
    vA2 = vA1 + 8
    vTT = vA1
    for s in range(2):
        a(f"ds_read_b64_tr_b16 v[{vA2+4*s}:{vA2+4*s+1}], v{vTRB} offset:{s*128}")
        a(f"ds_read_b64_tr_b16 v[{vA2+4*s+2}:{vA2+4*s+3}], v{vTRB} offset:{s*128+64}")
    a(f"ds_write_b64 v{vA2A}, v[{vZ}:{vZ+1}]")
    a("s_nop 1")
    def silu(ct):
        d = vD1 + 16 * ct
        for half in range(2):
            b = d + 8 * half
            for i in range(8):
                a(f"v_exp_f32 v{vTT+i}, v{b+i}")
            for i in range(4):
                a(f"v_pk_add_f32 v[{vTT+2*i}:{vTT+2*i+1}], v[{vTT+2*i}:{vTT+2*i+1}], 1.0 op_sel_hi:[1,0]")
            for i in range(8):
                a(f"v_rcp_f32 v{vTT+i}, v{vTT+i}")
            for i in range(4):
                a(f"v_pk_mul_f32 v[{vTT+2*i}:{vTT+2*i+1}], v[{vTT+2*i}:{vTT+2*i+1}], v[{b+2*i}:{b+2*i+1}]")
            for i in range(4):
                a(f"v_cvt_pk_bf16_f32 v{d+4*half+i}, v{vTT+2*i}, v{vTT+2*i+1}")
    def mf2(ct):
        d = vD2 + 16 * ct
        m = vD1 + 16 * ct
        for s in range(2):
            a(f"v_mfma_f32_32x32x16_bf16 v[{d}:{d+15}], v[{vA2+4*s}:{vA2+4*s+3}], v[{m+4*s}:{m+4*s+3}], v[{d}:{d+15}]")
    silu(0)
    a("s_waitcnt lgkmcnt(0)")
    a("s_nop 0")
    mf2(0)
    silu(1)
    a(f"s_cmp_lt_u32 s{sT}, s{sTE}")
    a("s_nop 0")
    mf2(1)
    a(f"""
    s_cbranch_scc1 K2_TILE
    s_mul_i32 s54, s{sG}, {8*ACCM_STRIDE}
    s_add_u32 s54, s54, {L_ACCM}
    s_mul_i32 s55, s{sG}, {8*432}
    s_add_u32 s55, s55, {L_ACCP}
    v_mul_u32_u24 v{vT}, {ACCM_STRIDE}, v{vHH}
    v_lshl_add_u32 v{vT}, v{vF5}, 2, v{vT}
    v_add_u32 v{vT}, s54, v{vT}
    v_mul_u32_u24 v{vA1A}, 432, v{vHH}
    v_lshl_add_u32 v{vA1A}, v{vF5}, 2, v{vA1A}
    v_add_u32 v{vA1A}, s55, v{vA1A}
    s_nop 3
    """)
    for q in range(4):
        for ct in range(2):
            a(f"ds_add_f32 v{vT}, v{vD2+16*ct+4*q} offset:{q*2*ACCM_STRIDE + ct*128}")
    for r in range(16):
        if r & 3:
            a(f"v_mul_f32 v{vD1+r}, v{vD2+r}, v{vWX}")
    for r in range(16):
        if r & 3:
            a(f"v_fmac_f32 v{vD1+r}, v{vD2+16+r}, v{vWX+1}")
    for q in range(4):
        for c in range(1, 4):
            a(f"ds_add_f32 v{vA1A}, v{vD1+4*q+c} offset:{q*2*432 + (c-1)*144}")
    a(f"""
    K2_NEXT_GROUP:
    s_add_u32 s{sG}, s{sG}, 1
    s_cmp_lt_u32 s{sT}, s{sT1}
    s_cbranch_scc1 K2_GROUP
    K2_WAVE_DONE:
    s_cmp_ge_u32 s{sCE}, {NWG}
    s_cbranch_scc1 K2_EPI
    s_mov_b32 s{sCB}, s{sCE}
    v_lshrrev_b32 v{vWX}, 16, v{vWX}
    v_lshrrev_b32 v{vWX+1}, 16, v{vWX+1}
    s_lshl_b32 s64, s2, 4
    s_add_u32 s64, s64, {WS_OFFS}
    v_lshlrev_b32 v3, 12, v0
    s_cmp_gt_u32 s{sW}, 3
    s_cbranch_scc1 K2_NB1
    buffer_load_dwordx4 v[{vO}:{vO+3}], v3, s[{sWS}:{sWS+3}], s64 offen
    K2_NB1:
    s_waitcnt lgkmcnt(0)
    s_barrier
    s_branch K2_BATCH
    """)
    a.label("K2_EPI")
    vA, vB, vHR, vD = 4, 76, 108, 44
    a(f"""
    s_cmp_gt_u32 s{sW}, 3
    s_cbranch_scc1 K2_EP_B
    s_lshr_b32 s55, s{sW}, 1
    s_and_b32 s56, s{sW}, 1
    s_lshl_b32 s57, s56, 10
    s_add_u32 s57, s57, {WS_WF + 16*1024}
    v_lshlrev_b32 v2, 4, v{vLANE}
    """)
    for ks in range(8):
        a(f"buffer_load_dwordx4 v[{vA+4*ks}:{vA+4*ks+3}], v2, s[{sWS}:{sWS+3}], s57 offen offset:{(ks%2)*2048}")
        if ks % 2 == 1:
            a("s_add_u32 s57, s57, 4096")
    a(f"""
    s_lshl_b32 s58, s55, 5
    v_add_u32 v116, s58, v{vF5}
    v_add_u32 v117, s{sNS}, v116
    v_lshlrev_b32 v117, 7, v117
    v_lshl_add_u32 v118, v{vHH}, 4, v117
    """)
    for ks in range(4):
        a(f"buffer_load_dwordx4 v[{vB+4*ks}:{vB+4*ks+3}], v118, s[{sH}:{sH+3}], 0 offen offset:{ks*32}")
    a(f"""
    s_lshl_b32 s58, s56, 6
    v_lshl_add_u32 v117, v{vHH}, 3, v117
    v_add_u32 v117, s58, v117
    """)
    for q in range(4):
        a(f"buffer_load_dwordx2 v[{vHR+2*q}:{vHR+2*q+1}], v117, s[{sH}:{sH+3}], 0 offen offset:{q*16}")
    a(f"""
    v_mul_u32_u24 v118, {ACCM_STRIDE}, v116
    v_lshl_add_u32 v118, v{vHH}, 5, v118
    v_add_u32 v118, {L_ACCM}, v118
    K2_EP_B:
    s_waitcnt lgkmcnt(0)
    s_barrier
    s_cmp_gt_u32 s{sW}, 5
    s_cbranch_scc1 K2_END
    s_cmp_gt_u32 s{sW}, 3
    s_cbranch_scc1 K2_EP_POS
    s_mov_b32 s60, {NLN2:#x}
    s_mov_b32 s61, {NLOG2E:#x}
    """)
    vM = 120
    for k in range(4):
        a(f"ds_read_b128 v[{vM+8*k}:{vM+8*k+3}], v118 offset:{k*64}")
        a(f"ds_read_b128 v[{vM+8*k+4}:{vM+8*k+7}], v118 offset:{k*64+16}")
    a("s_waitcnt lgkmcnt(0)")
    for r in range(32):
        a(f"v_mul_f32 v{vM+r}, s60, v{vM+r}")
    for r in range(16):
        a(f"v_cvt_pk_bf16_f32 v{vB+16+r}, v{vM+2*r}, v{vM+2*r+1}")
    a("s_waitcnt vmcnt(0)")
    a("s_nop 1")
    for ks in range(8):
        c = "0" if ks == 0 else f"v[{vD}:{vD+15}]"
        a(f"v_mfma_f32_32x32x16_bf16 v[{vD}:{vD+15}], v[{vA+4*ks}:{vA+4*ks+3}], v[{vB+4*ks}:{vB+4*ks+3}], {c}")
    a(f"""
    v_cmp_gt_u32 vcc, s{sNN}, v116
    s_nop 15
    """)
    vE = 60
    for r in range(16):
        a(f"v_mul_f32 v{vE+r}, s61, v{vD+r}")
    for r in range(16):
        a(f"v_exp_f32 v{vE+r}, v{vE+r}")
    for r in range(16):
        a(f"v_add_f32 v{vE+r}, 1.0, v{vE+r}")
    for r in range(16):
        a(f"v_rcp_f32 v{vE+r}, v{vE+r}")
    for q in range(4):
        for p in range(2):
            a(f"v_lshlrev_b32 v{vM+4*q+2*p}, 16, v{vHR+2*q+p}")
            a(f"v_and_b32 v{vM+4*q+2*p+1}, 0xffff0000, v{vHR+2*q+p}")
    for r in range(16):
        a(f"v_fmac_f32 v{vM+r}, v{vD+r}, v{vE+r}")
    for r in range(8):
        a(f"v_cvt_pk_bf16_f32 v{vE+r}, v{vM+2*r}, v{vM+2*r+1}")
    a(f"""
    s_and_saveexec_b64 s[54:55], vcc
    s_cbranch_execz K2_END
    """)
    for q in range(4):
        a(f"buffer_store_dwordx2 v[{vE+2*q}:{vE+2*q+1}], v117, s[{sOUT}:{sOUT+3}], 0 offen offset:{q*16}")
    a(f"""
    s_endpgm
    K2_EP_POS:
    v_subrev_u32 v2, 256, v0
    v_mul_u32_u24 v3, 144, v2
    v_add_u32 v3, {L_ACCP}, v3
    s_mul_i32 s54, s{sNN}, 3
    v_cmp_gt_u32 vcc, s54, v2
    s_and_saveexec_b64 s[56:57], vcc
    s_cbranch_execz K2_END
    """)
    for k in range(8):
        a(f"ds_read_b128 v[{4+4*k}:{7+4*k}], v3 offset:{k*16}")
    a(f"""
    v_mul_u32_u24 v40, 171, v2
    v_lshrrev_b32 v40, 9, v40
    v_add_u32 v40, v40, v2
    v_lshlrev_b32 v40, 2, v40
    v_add_u32 v40, {L_POSD}, v40
    ds_read_b32 v41, v40
    s_mul_i32 s54, s{sNS}, 6
    s_add_u32 s54, s54, {N*128}
    v_lshlrev_b32 v2, 1, v2
    s_mov_b32 s60, {NLN2:#x}
    s_waitcnt lgkmcnt(0)
    """)
    for step in (16, 8, 4, 2, 1):
        for r in range(step):
            a(f"v_add_f32 v{4+r}, v{4+r}, v{4+r+step}")
    a(f"""
    v_fmac_f32 v41, s60, v4
    v_cvt_pk_bf16_f32 v41, v41, v41
    buffer_store_short v41, v2, s[{sOUT}:{sOUT+3}], s54 offen
    K2_END:
    s_endpgm
    """)
    return L_END, NV, 100

HEADER = open(__file__.rsplit("/", 1)[0] + "/header.txt").read()

def main():
    a = Asm()
    k1 = Asm(); lds1, v1, s1 = gen_k1(k1)
    k2 = Asm(); lds2, v2, s2 = gen_k2(k2)
    out = HEADER
    out += f"; @launch kernel=egnn_sort_kernel grid=({NWG},1,1) block=(640,1,1) lds={lds1}\n"
    out += f"; @launch kernel=egnn_main_kernel grid=({NWG},1,1) block=({NW*64},1,1) lds={lds2}\n"
    out += '.amdgcn_target "amdgcn-amd-amdhsa--gfx950"\n.text\n'
    for name, k in (("egnn_sort_kernel", k1), ("egnn_main_kernel", k2)):
        out += f".globl {name}\n.p2align 8\n.type {name},@function\n" + k.text()
    out += '.section .rodata,"a"\n'
    for name, v, s in (("egnn_sort_kernel", v1, s1), ("egnn_main_kernel", v2, s2)):
        acc = (v + 3) // 4 * 4
        out += f""".p2align 6
.amdhsa_kernel {name}
  .amdhsa_next_free_vgpr {v}
  .amdhsa_next_free_sgpr {s}
  .amdhsa_accum_offset {acc}
  .amdhsa_group_segment_fixed_size 0
  .amdhsa_kernarg_size 88
  .amdhsa_user_sgpr_count 2
  .amdhsa_user_sgpr_kernarg_segment_ptr 1
  .amdhsa_system_sgpr_workgroup_id_x 1
.end_amdhsa_kernel
"""
    dst = sys.argv[1] if len(sys.argv) > 1 else f"cdna_kernels/{NAME}.s"
    open(dst, "w").write(out)
    print("wrote", dst, "lds", lds1, lds2)

main()
```
